```python
import torch

def _softmax(x, axis=-1):
    return torch.softmax(x, dim=axis)
def _gelu(x):
    return torch.nn.functional.gelu(x, approximate="tanh")
def _silu(x):
    return torch.nn.functional.silu(x)
def _sigmoid(x):
    return torch.sigmoid(x)
def _layernorm(x, axis=-1, eps=1e-5):
    m = x.mean(dim=axis, keepdim=True)
    v = x.var(dim=axis, keepdim=True, unbiased=False)
    return (x - m) / torch.sqrt(v + eps)
def _scatter_add(tgt, idx, src, axis=0):
    return tgt.clone().index_add_(axis, idx, src)
def _segment_sum(src, seg, n):
    out = torch.zeros((n,) + src.shape[1:], dtype=src.dtype)
    return out.index_add_(0, seg, src)
def _pad(x, pw):
    flat = tuple(v for pair in reversed(pw) for v in pair)
    return torch.nn.functional.pad(x, flat)

kernel_name = 'interleave_layers__linear_attn_block__mixer_channel_mlp__prompt'

def setup_inputs():

    _w = (lambda a: (lambda t: t.to(torch.bfloat16) if t.is_floating_point() else t)(torch.as_tensor(a)))
    def _A_setup():
        B, S, D = 1, 2048, 1024
        return {
            "x": _w((lambda *s: torch.randn(*s, dtype=torch.bfloat16) * 0.05)(B, S, D)),
            "wqkv": _w((lambda *s: torch.randn(*s, dtype=torch.bfloat16) * 0.05)(D, 3 * D)),
            "wo": _w((lambda *s: torch.randn(*s, dtype=torch.bfloat16) * 0.05)(D, D)),
        }
    _A_in = _A_setup()

    def _B_setup():
        B, S, D, F = 1, 2048, 1024, 3584
        return {
            "x": _w((lambda *s: torch.randn(*s, dtype=torch.bfloat16) * 0.05)(B, S, D)),
            "w1": _w((lambda *s: torch.randn(*s, dtype=torch.bfloat16) * 3.2)(D, F) * (D ** -0.5)),
            "b1": _w((lambda *s: torch.randn(*s, dtype=torch.bfloat16) * 0.4)(F)),
            "w2": _w((lambda *s: torch.randn(*s, dtype=torch.bfloat16) * 0.4)(F, D) * (F ** -0.5)),
            "b2": _w((lambda *s: torch.randn(*s, dtype=torch.bfloat16) * 0.4)(D)),
        }
    _B_in = _B_setup()

    return {
        "A_x": _A_in["x"],
        "A_wqkv": _A_in["wqkv"],
        "A_wo": _A_in["wo"],
        "B_x": _B_in["x"],
        "B_w1": _B_in["w1"],
        "B_b1": _B_in["b1"],
        "B_w2": _B_in["w2"],
        "B_b2": _B_in["b2"],
    }

def reference(A_x, A_wqkv, A_wo, B_x, B_w1, B_b1, B_w2, B_b2):
    def _A_ref(x, wqkv, wo):
        B, S, D = x.shape
        H = 32; Dh = D // H
        qkv = (lambda x, *d: x.permute(*d))((x @ wqkv).reshape(B, S, 3, H, Dh), 2, 0, 3, 1, 4)
        q, k, v = qkv[0], qkv[1], qkv[2]
        phi = lambda t: torch.where(t > 0, t + 1, torch.exp(t)) + 1e-6
        pq, pk = phi(q), phi(k)
        kv = torch.einsum("bhsd,bhse->bhde", pk, v)
        z = torch.einsum("bhsd->bhd", pk)
        num = torch.einsum("bhqd,bhde->bhqe", pq, kv)
        den = torch.einsum("bhqd,bhd->bhq", pq, z)[..., None] + 1e-6
        o = num / den
        return (lambda x, *d: x.permute(*d))(o, 0, 2, 1, 3).reshape(B, S, D) @ wo

    def _B_ref(x, w1, b1, w2, b2):
        y = _layernorm(x, axis=-1)
        h = _gelu(torch.einsum("bsd,df->bsf", y, w1) + b1)
        return torch.einsum("bsf,fd->bsd", h, w2) + b2

    x = A_x
    x = x + _A_ref(_layernorm(x, axis=-1), A_wqkv, A_wo)
    x = x + _B_ref(_layernorm(x, axis=-1), B_w1, B_b1, B_w2, B_b2)
    x = x + _A_ref(_layernorm(x, axis=-1), A_wqkv, A_wo)
    x = x + _B_ref(_layernorm(x, axis=-1), B_w1, B_b1, B_w2, B_b2)
    return x
```

```python
class Kern:
    def __init__(self, name):
        self.name = name
        self.l = []
        self.nvgpr = 256
        self.nsgpr = 102
        self.accum_offset = 256
    def __call__(self, s):
        for ln in s.strip("\n").split("\n"):
            ln = ln.strip()
            if ln.startswith("buffer_") and "offset:" in ln:
                off = int(ln.split("offset:")[1].split()[0])
                assert off < 4096, ln
            if ln.startswith("ds_") and "offset:" in ln:
                off = int(ln.split("offset:")[1].split()[0])
                assert off < 65536, ln
            self.l.append("    " + ln)
    def label(self, s):
        self.l.append(s + ":")
    def text(self):
        out = []
        out.append(".globl %s" % self.name)
        out.append(".p2align 8")
        out.append(".type %s,@function" % self.name)
        out.append("%s:" % self.name)
        out.extend(self.l)
        return "\n".join(out) + "\n"
    def desc(self):
        return (".amdhsa_kernel %s\n"
                "  .amdhsa_next_free_vgpr %d\n"
                "  .amdhsa_next_free_sgpr %d\n"
                "  .amdhsa_accum_offset %d\n"
                "  .amdhsa_group_segment_fixed_size 0\n"
                "  .amdhsa_kernarg_size 88\n"
                "  .amdhsa_user_sgpr_count 2\n"
                "  .amdhsa_user_sgpr_kernarg_segment_ptr 1\n"
                "  .amdhsa_system_sgpr_workgroup_id_x 1\n"
                ".end_amdhsa_kernel\n") % (self.name, self.nvgpr, self.nsgpr, self.accum_offset)

def vr(a, n=1):
    return "v%d" % a if n == 1 else "v[%d:%d]" % (a, a + n - 1)
def ar(a, n=1):
    return "a%d" % a if n == 1 else "a[%d:%d]" % (a, a + n - 1)
def sr(a, n=1):
    return "s%d" % a if n == 1 else "s[%d:%d]" % (a, a + n - 1)

HEADER = """; Kernarg layout for this problem (88 bytes, ptrs only, base s[0:1]):
"""

def build_file(kernels, launches):
    s = HEADER
    for (n, g, b, lds) in launches:
        s += "; @launch kernel=%s grid=(%d,1,1) block=(%d,1,1) lds=%d\n" % (n, g, b, lds)
    s += '.amdgcn_target "amdgcn-amd-amdhsa--gfx950"\n.text\n'
    for k in kernels:
        s += k.text()
    s += '.section .rodata,"a"\n'
    for k in kernels:
        s += ".p2align 6\n" + k.desc()
    return s
```

```python
from asmlib import *

A_BYTES = 16384
P_BYTES = 8192

class GemmCfg:
    def __init__(self, **kw):
        self.a_arg = 0; self.a_off = 0; self.lda = 1024; self.a_bytes = 0
        self.b_arg = 8; self.b_off = 0; self.ldb = 3072; self.b_bytes = 0
        self.K = 1024; self.NP = 3; self.S = 3
        self.tiles_n = 16
        self.tn_stride = 64*2
        self.p_stride = 1024*2
        self.swap = None
        self.extra_ptrs = []
        self.epilogue = None
        self.split = 0.5
        self.abl = ''
        for k, v in kw.items():
            setattr(self, k, v)

S_TM, S_TN, S_W, S_KH, S_WM, S_WN = 24, 25, 26, 27, 28, 29
S_CNT, S_AOFF, S_BOFF, S_DBUF, S_RBUF = 30, 31, 32, 36, 37
S_T0 = 38
V_LANE = 1
V_DA0, V_DA1, V_DB = 10, 11, 12
V_AB, V_BB0, V_BB1 = 13, 14, 15
V_AA, V_BA0, V_BA1 = 16, 17, 18
V_FA = 20

def stamp(k, idx):
    if not getattr(k, "stamps", False): return
    k("s_memtime s[60:61]")
    k("s_waitcnt lgkmcnt(0)")
    k("v_mov_b32 v9, s60")
    k("buffer_store_dword v9, v8, s[56:59], 0 offen offset:%d" % (idx * 4))

def gemm_kernel(name, c):
    k = Kern(name)
    k.stamps = getattr(c, "stamps", False)
    NP = c.NP; NF = 2 * NP; S = c.S
    STAGE = A_BYTES + NP * P_BYTES
    NK = c.K // 64
    V_FB = V_FA + 32
    FA = lambda cs, fm: V_FA + cs * 16 + fm * 4
    FB = lambda cs, f: V_FB + cs * 4 * NF + f * 4
    ACC = lambda fm, f: (fm * NF + f) * 4
    nv = V_FB + 8 * NF
    nv = max(nv, 64)
    k.accum_offset = (nv + 3) // 4 * 4
    k.nvgpr = k.accum_offset + 16 * NF
    k.lds = S * STAGE
    NT = 16 * c.tiles_n
    D = 2 + NP
    k.cfg = c; k.NF = NF; k.ACC = ACC; k.V_FB = V_FB; k.nv_frag_end = nv

    k("s_cmp_ge_u32 s2, %d" % NT)
    k("s_cbranch_scc1 L_end_%s" % name)
    k("s_load_dwordx2 s[40:41], s[0:1], %d" % c.a_arg)
    k("s_load_dwordx2 s[42:43], s[0:1], %d" % c.b_arg)
    for (off, sp) in c.extra_ptrs:
        k("s_load_dwordx2 %s, s[0:1], %d" % (sr(sp, 2), off))
    k("v_and_b32 v1, 63, v0")
    k("v_lshrrev_b32 v2, 6, v0")
    k("s_and_b32 s24, s2, 15")
    k("v_readfirstlane_b32 s26, v2")
    k("s_lshr_b32 s25, s2, 4")
    k("s_nop 1")
    k("s_lshr_b32 s27, s26, 2")
    k("s_and_b32 s28, s26, 1")
    k("s_bfe_u32 s29, s26, 0x10001")
    k("v_lshrrev_b32 v2, 3, v1")
    k("v_and_b32 v3, 7, v1")
    k("v_xor_b32 v3, v3, v2")
    k("s_lshl_b32 s38, s26, 4")
    k("s_lshl_b32 s39, s24, 7")
    k("s_add_u32 s38, s38, s39")
    k("v_add_u32 v4, s38, v2")
    k("s_mov_b32 s38, %d" % (c.lda * 2))
    k("v_mul_lo_u32 v4, v4, s38")
    k("v_lshlrev_b32 v3, 4, v3")
    k("v_add_u32 v10, v4, v3")
    k("v_add_u32 v11, %d, v10" % (8 * c.lda * 2))
    k("v_lshrrev_b32 v2, 3, v1")
    k("s_lshl_b32 s38, s26, 3")
    k("v_add_u32 v2, s38, v2")
    k("s_mov_b32 s38, %d" % (c.ldb * 2))
    k("v_mul_lo_u32 v2, v2, s38")
    k("v_bfe_u32 v3, v1, 1, 2")
    k("v_bfe_u32 v4, v1, 4, 1")
    k("s_and_b32 s38, s26, 1")
    k("s_lshl_b32 s38, s38, 1")
    k("v_or_b32 v4, s38, v4")
    k("v_xor_b32 v3, v3, v4")
    k("v_lshlrev_b32 v3, 5, v3")
    k("v_and_b32 v4, 1, v1")
    k("v_lshlrev_b32 v4, 4, v4")
    k("v_add3_u32 v12, v2, v3, v4")
    k("v_and_b32 v2, 15, v1")
    k("s_lshl_b32 s38, s28, 6")
    k("v_add_u32 v2, s38, v2")
    k("v_lshlrev_b32 v2, 7, v2")
    k("v_lshrrev_b32 v3, 4, v1")
    k("s_lshl_b32 s38, s27, 2")
    k("v_add_u32 v3, s38, v3")
    k("v_and_b32 v4, 7, v1")
    k("v_xor_b32 v3, v3, v4")
    k("v_lshlrev_b32 v3, 4, v3")
    k("v_add_u32 v13, v2, v3")
    k("v_lshrrev_b32 v2, 4, v1")
    k("v_lshlrev_b32 v2, 3, v2")
    k("v_bfe_u32 v3, v1, 2, 2")
    k("v_add_u32 v2, v2, v3")
    k("v_lshlrev_b32 v2, 7, v2")
    k("v_and_b32 v3, 3, v1")
    k("v_lshlrev_b32 v3, 3, v3")
    k("v_add_u32 v2, v2, v3")
    k("s_lshl_b32 s38, s27, 12")
    k("s_add_u32 s38, s38, %d" % A_BYTES)
    k("v_add_u32 v2, s38, v2")
    k("v_bfe_u32 v3, v1, 3, 1")
    k("v_bfe_u32 v4, v1, 4, 1")
    k("v_lshlrev_b32 v4, 1, v4")
    k("v_or_b32 v3, v3, v4")
    k("s_lshl_b32 s38, s29, 1")
    k("v_xor_b32 v4, s38, v3")
    k("v_lshlrev_b32 v4, 5, v4")
    k("v_add_u32 v14, v2, v4")
    k("v_xor_b32 v4, 32, v4")
    k("v_add_u32 v15, v2, v4")
    if k.stamps:
        k("s_load_dwordx2 s[56:57], s[0:1], 80")
        k("s_waitcnt lgkmcnt(0)")
        k("s_add_u32 s56, s56, %d" % (200 * 1024 * 1024))
        k("s_addc_u32 s57, s57, 0")
        k("s_mov_b32 s58, 0x1000000")
        k("s_mov_b32 s59, 0x00020000")
        k("s_lshl_b32 s38, s2, 3")
        k("s_add_u32 s38, s38, s26")
        k("s_lshl_b32 s38, s38, 6")
        k("v_mov_b32 v8, s38")
        stamp(k, 0)
    for i in range(16 * NF):
        k("v_accvgpr_write_b32 a%d, 0" % i)
    k("s_waitcnt lgkmcnt(0)")
    def srd(d, p, off, nbytes):
        if off:
            k("s_add_u32 s%d, s%d, %d" % (d, p, off))
            k("s_addc_u32 s%d, s%d, 0" % (d + 1, p + 1))
        else:
            k("s_mov_b32 s%d, s%d" % (d, p))
            k("s_mov_b32 s%d, s%d" % (d + 1, p + 1))
        k("s_mov_b32 s%d, %d" % (d + 2, nbytes))
        k("s_mov_b32 s%d, 0x00020000" % (d + 3))
    k.srd = srd
    srd(4, 40, c.a_off, c.a_bytes)
    srd(8, 42, c.b_off, c.b_bytes)
    k("s_mov_b32 s31, 0")
    k("s_mul_i32 s32, s25, %d" % c.tn_stride)
    for p in range(1, NP):
        k("s_add_u32 s%d, s32, %d" % (32 + p, p * c.p_stride))
    k("s_mov_b32 s36, 0")

    def dma_stage():
        lines = []
        for jj in range(2):
            lines.append(["s_add_u32 m0, s36, s44" if jj == 0 else "s_add_u32 m0, s36, s45",
                          "buffer_load_dwordx4 v%d, s[4:7], s31 offen lds" % (10 + jj)])
        for p in range(NP):
            lines.append(["s_add_u32 m0, s36, s%d" % (46 + p),
                          "buffer_load_dwordx4 v12, s[8:11], s%d offen lds" % (32 + p)])
        adv = ["s_add_u32 s31, s31, 128"]
        for p in range(NP):
            adv.append("s_add_u32 s%d, s%d, %d" % (32 + p, 32 + p, 64 * c.ldb * 2))
        adv += ["s_add_u32 s36, s36, %d" % STAGE, "s_cmp_ge_u32 s36, %d" % (S * STAGE), "s_cselect_b32 s36, 0, s36"]
        return lines, adv
    k("s_lshl_b32 s44, s26, 11")
    k("s_add_u32 s45, s44, 1024")
    k("s_lshl_b32 s46, s26, 10")
    k("s_add_u32 s46, s46, %d" % A_BYTES)
    for p in range(1, NP):
        k("s_add_u32 s%d, s46, %d" % (46 + p, p * P_BYTES))

    def emit_dma_all():
        lines, adv = dma_stage()
        for a, b in lines:
            k(a); k("s_nop 0"); k(b)
        for a in adv:
            k(a)

    def frag_reads(cs):
        out = []
        if 'R' in c.abl: return []
        for fm in range(4):
            out.append("ds_read_b128 %s, v16 offset:%d" % (vr(FA(cs, fm), 4), fm * 2048))
        for p in range(NP):
            for e in range(2):
                f = 2 * p + e
                for t in range(2):
                    out.append("ds_read_b64_tr_b16 %s, v%d offset:%d" % (vr(FB(cs, f) + 2 * t, 2), 17 + e, p * P_BYTES + t * 512))
        return out

    def set_read_addr():
        k("v_add_u32 v16, s37, v13")
        k("v_add_u32 v17, s37, v14")
        k("v_add_u32 v18, s37, v15")
        k("s_add_u32 s37, s37, %d" % STAGE)
        k("s_cmp_ge_u32 s37, %d" % (S * STAGE))
        k("s_cselect_b32 s37, 0, s37")

    def mfmas(cs):
        out = []
        if 'M' in c.abl: return ["s_nop 0"] * (4 * NF)
        for fm in range(4):
            for f in range(NF):
                a = ar(ACC(fm, f), 4)
                if c.swap[f]:
                    out.append("v_mfma_f32_16x16x32_bf16 %s, %s, %s, %s" % (a, vr(FB(cs, f), 4), vr(FA(cs, fm), 4), a))
                else:
                    out.append("v_mfma_f32_16x16x32_bf16 %s, %s, %s, %s" % (a, vr(FA(cs, fm), 4), vr(FB(cs, f), 4), a))
        return out

    for st in range(min(S, NK)):
        emit_dma_all()
    stamp(k, 1)
    k("s_mov_b32 s37, 0")
    k("s_waitcnt vmcnt(%d)" % ((min(S, NK) - 1) * D))
    k("s_barrier")
    stamp(k, 2)
    set_read_addr()
    for ln in frag_reads(0):
        k(ln)

    def emit_iter(j, cs, do_dma, do_next, vmw):
        ms = mfmas(cs)
        h = int(len(ms) * c.split)
        k("s_waitcnt lgkmcnt(0)")
        for ln in ms[:h]:
            k(ln)
        if do_next:
            k("s_waitcnt vmcnt(%d)" % vmw)
            k("s_barrier")
            set_read_addr()
            for ln in frag_reads(1 - cs):
                k(ln)
        rest = ms[h:]
        if do_dma and 'D' not in c.abl:
            lines, adv = dma_stage()
            step = max(1, len(rest) // (len(lines) + 1))
            ri = 0
            for (a, b) in lines:
                k(a)
                k(rest[ri]); ri += 1
                k(b)
                for _ in range(step - 1):
                    if ri < len(rest):
                        k(rest[ri]); ri += 1
            for ln in rest[ri:]:
                k(ln)
            for a in adv:
                k(a)
        else:
            for ln in rest:
                k(ln)

    nmain = max(0, NK - S)
    nmain -= nmain % 2
    if nmain > 0:
        k("s_mov_b32 s30, %d" % (nmain // 2))
        k.label("L_loop_%s" % name)
        emit_iter(0, 0, True, True, (S - 2) * D)
        emit_iter(1, 1, True, True, (S - 2) * D)
        k("s_sub_u32 s30, s30, 1")
        k("s_cmp_lg_u32 s30, 0")
        k("s_cbranch_scc1 L_loop_%s" % name)
    for j in range(nmain, NK):
        issued_last = min(j + S - 1, NK - 1)
        vmw = max(0, issued_last - (j + 1)) * D
        emit_iter(j, j % 2, j + S < NK, j + 1 < NK, vmw)

    stamp(k, 3)
    k("s_waitcnt vmcnt(0) lgkmcnt(0)")
    k("s_barrier")
    REG = 8 * NF * 256
    k("s_xor_b32 s38, s26, 4")
    k("s_mul_i32 s38, s38, %d" % REG)
    k("v_lshlrev_b32 v2, 4, v1")
    k("v_add_u32 v2, s38, v2")
    k("s_nop 7")
    k("s_cmp_eq_u32 s27, 0")
    k("s_cbranch_scc0 L_give1_%s" % name)
    for idx, (fm, f) in enumerate([(fm, f) for fm in (2, 3) for f in range(NF)]):
        k("ds_write_b128 v2, %s offset:%d" % (ar(ACC(fm, f), 4), idx * 1024))
    k("s_branch L_give_done_%s" % name)
    k.label("L_give1_%s" % name)
    for idx, (fm, f) in enumerate([(fm, f) for fm in (0, 1) for f in range(NF)]):
        k("ds_write_b128 v2, %s offset:%d" % (ar(ACC(fm, f), 4), idx * 1024))
    k.label("L_give_done_%s" % name)
    k("s_waitcnt lgkmcnt(0)")
    k("s_barrier")
    k("s_mul_i32 s38, s26, %d" % REG)
    k("v_lshlrev_b32 v2, 4, v1")
    k("v_add_u32 v2, s38, v2")
    k("s_mul_i32 s38, s27, %d" % (2 * NF * 4))
    k("s_cmp_eq_u32 s27, 0")
    k("s_cbranch_scc0 L_keep1_%s" % name)
    def keep(fms):
        R = V_FA
        for idx, (fm, f) in enumerate([(fm, f) for fm in fms for f in range(NF)]):
            k("ds_read_b128 %s, v2 offset:%d" % (vr(R + idx * 4, 4), idx * 1024))
        k("s_waitcnt lgkmcnt(0)")
        T = V_FA + 8 * NF
        assert T + 4 <= k.accum_offset or True
        for idx, (fm, f) in enumerate([(fm, f) for fm in fms for f in range(NF)]):
            for i in range(4):
                k("v_accvgpr_read_b32 v5, a%d" % (ACC(fm, f) + i))
                k("s_nop 0")
                k("v_add_f32 v%d, v5, v%d" % (R + idx * 4 + i, R + idx * 4 + i))
    keep((0, 1))
    k("s_branch L_keep_done_%s" % name)
    k.label("L_keep1_%s" % name)
    keep((2, 3))
    k.label("L_keep_done_%s" % name)
    stamp(k, 4)
    c.epilogue(k, c)
    stamp(k, 5)
    k("s_waitcnt vmcnt(0)")
    k.label("L_end_%s" % name)
    k("s_endpgm")
    return k
```

```python
import sys
from asmlib import *
from gemm import *

MB = 1024 * 1024
WS_XN = 0 * MB
WS_PQ = 4 * MB
WS_O = 8 * MB
WS_X1 = 12 * MB
WS_X2 = 16 * MB
WS_X3 = 20 * MB
WS_H = 24 * MB
WS_KV = 40 * MB
KV_SET = 32 * 1056 * 4
XB = 2048 * 1024 * 2
WS_ARG = 80

def bf16r_pair(k, a, b, t):
    k("v_cvt_pk_bf16_f32 v%d, v%d, v%d" % (t, a, b))
    k("v_lshlrev_b32 v%d, 16, v%d" % (a, t))
    k("v_and_b32 v%d, 0xffff0000, v%d" % (b, t))

def wave_sum(k, v, t):
    k("s_nop 1")
    k("v_add_f32_dpp v%d, v%d, v%d quad_perm:[1,0,3,2] row_mask:0xf bank_mask:0xf" % (v, v, v))
    k("s_nop 1")
    k("v_add_f32_dpp v%d, v%d, v%d quad_perm:[2,3,0,1] row_mask:0xf bank_mask:0xf" % (v, v, v))
    k("s_nop 1")
    k("v_add_f32_dpp v%d, v%d, v%d row_ror:4 row_mask:0xf bank_mask:0xf" % (v, v, v))
    k("s_nop 1")
    k("v_add_f32_dpp v%d, v%d, v%d row_ror:8 row_mask:0xf bank_mask:0xf" % (v, v, v))
    k("v_mov_b32 v%d, v%d" % (t, v))
    k("s_nop 1")
    k("v_permlane16_swap_b32 v%d, v%d" % (v, t))
    k("s_nop 1")
    k("v_add_f32 v%d, v%d, v%d" % (v, v, t))
    k("v_mov_b32 v%d, v%d" % (t, v))
    k("s_nop 1")
    k("v_permlane32_swap_b32 v%d, v%d" % (v, t))
    k("s_nop 1")
    k("v_add_f32 v%d, v%d, v%d" % (v, v, t))

def ln_kernel(name, src_arg, src_off, dst_off, double, zero_kv):
    k = Kern(name)
    k.nvgpr = 64; k.accum_offset = 64; k.nsgpr = 48
    k("s_cmp_ge_u32 s2, 512")
    k("s_cbranch_scc1 L_end_%s" % name)
    k("s_load_dwordx2 s[4:5], s[0:1], %d" % src_arg)
    k("s_load_dwordx2 s[6:7], s[0:1], %d" % WS_ARG)
    k("v_lshrrev_b32 v2, 6, v0")
    k("v_and_b32 v1, 63, v0")
    k("s_lshl_b32 s3, s2, 2")
    k("v_add_u32 v2, s3, v2")
    k("v_lshlrev_b32 v2, 11, v2")
    k("v_lshlrev_b32 v3, 4, v1")
    k("v_add_u32 v2, v2, v3")
    k("s_waitcnt lgkmcnt(0)")
    if src_off:
        k("s_add_u32 s8, s4, %d" % src_off); k("s_addc_u32 s9, s5, 0")
    else:
        k("s_mov_b32 s8, s4"); k("s_mov_b32 s9, s5")
    k("s_mov_b32 s10, %d" % XB); k("s_mov_b32 s11, 0x00020000")
    k("s_add_u32 s12, s6, %d" % dst_off); k("s_addc_u32 s13, s7, 0")
    k("s_mov_b32 s14, %d" % XB); k("s_mov_b32 s15, 0x00020000")
    k("buffer_load_dwordx4 v[4:7], v2, s[8:11], 0 offen")
    k("buffer_load_dwordx4 v[8:11], v2, s[8:11], 0 offen offset:1024")
    if zero_kv:
        k("s_cmp_ge_u32 s2, 66")
        k("s_cbranch_scc1 L_nz_%s" % name)
        k("s_add_u32 s16, s6, %d" % WS_KV); k("s_addc_u32 s17, s7, 0")
        k("s_mov_b32 s18, %d" % (2 * KV_SET)); k("s_mov_b32 s19, 0x00020000")
        k("s_lshl_b32 s3, s2, 12")
        k("v_lshlrev_b32 v12, 4, v0")
        k("v_add_u32 v12, s3, v12")
        k("v_mov_b32 v14, 0"); k("v_mov_b32 v15, 0"); k("v_mov_b32 v16, 0"); k("v_mov_b32 v17, 0")
        k("buffer_store_dwordx4 v[14:17], v12, s[16:19], 0 offen")
        k.label("L_nz_%s" % name)
    k("s_waitcnt vmcnt(0)")
    for i in range(8):
        k("v_lshlrev_b32 v%d, 16, v%d" % (20 + 2 * i, 4 + i))
        k("v_and_b32 v%d, 0xffff0000, v%d" % (21 + 2 * i, 4 + i))
    for rep in range(2 if double else 1):
        k("v_add_f32 v40, v20, v21")
        for i in range(2, 16):
            k("v_add_f32 v40, v40, v%d" % (20 + i))
        wave_sum(k, 40, 41)
        k("v_mul_f32 v40, 0x3a800000, v40")
        k("v_sub_f32 v42, v20, v40")
        k("v_mul_f32 v43, v42, v42")
        for i in range(1, 16):
            k("v_sub_f32 v42, v%d, v40" % (20 + i))
            k("v_fmac_f32 v43, v42, v42")
        wave_sum(k, 43, 41)
        k("v_mul_f32 v43, 0x3a800000, v43")
        bf16r_pair(k, 40, 43, 41)
        k("v_add_f32 v43, 0x3727c5ac, v43")
        k("v_mov_b32 v44, v43")
        bf16r_pair(k, 43, 44, 41)
        k("v_sqrt_f32 v43, v43")
        k("s_nop 0")
        k("v_mov_b32 v44, v43")
        bf16r_pair(k, 43, 44, 41)
        k("v_rcp_f32 v43, v43")
        k("s_nop 0")
        for i in range(0, 16, 2):
            k("v_sub_f32 v%d, v%d, v40" % (20 + i, 20 + i))
            k("v_sub_f32 v%d, v%d, v40" % (21 + i, 21 + i))
            bf16r_pair(k, 20 + i, 21 + i, 41)
            k("v_mul_f32 v%d, v%d, v43" % (20 + i, 20 + i))
            k("v_mul_f32 v%d, v%d, v43" % (21 + i, 21 + i))
            if rep == 0 and double:
                bf16r_pair(k, 20 + i, 21 + i, 41)
    for i in range(8):
        k("v_cvt_pk_bf16_f32 v%d, v%d, v%d" % (4 + i, 20 + 2 * i, 21 + 2 * i))
    k("buffer_store_dwordx4 v[4:7], v2, s[12:15], 0 offen")
    k("buffer_store_dwordx4 v[8:11], v2, s[12:15], 0 offen offset:1024")
    k("s_waitcnt vmcnt(0)")
    k.label("L_end_%s" % name)
    k("s_endpgm")
    return k

LOG2E = 0x3fb8aa3b
def phi4(k, R, T):
    bf16r_pair(k, R, R + 1, T)
    bf16r_pair(k, R + 2, R + 3, T)
    for i in range(4):
        k("v_mul_f32 v%d, 0x%x, v%d" % (T + i, LOG2E, R + i))
    for i in range(4):
        k("v_exp_f32 v%d, v%d" % (T + i, T + i))
    for i in range(4):
        k("v_cmp_lt_f32 vcc, 0, v%d" % (R + i))
        k("v_add_f32 v%d, 1.0, v%d" % (R + i, R + i))
        k("s_nop 0")
        k("v_cndmask_b32 v%d, v%d, v%d, vcc" % (R + i, T + i, R + i))
    bf16r_pair(k, R, R + 1, T)
    bf16r_pair(k, R + 2, R + 3, T)
    for i in range(4):
        k("v_add_f32 v%d, 0x358637bd, v%d" % (R + i, R + i))

def epi_qkv(k, c):
    NF = k.NF
    kvoff = c.kv_off
    T = V_FA + 8 * NF
    R = lambda fl, f: V_FA + (fl * NF + f) * 4
    k.srd(12, 50, WS_PQ, XB)
    k("v_and_b32 v2, 15, v1")
    k("s_lshl_b32 s38, s24, 7")
    k("s_lshl_b32 s39, s28, 6")
    k("s_add_u32 s38, s38, s39")
    k("s_lshl_b32 s39, s27, 5")
    k("s_add_u32 s38, s38, s39")
    k("v_add_u32 v2, s38, v2")
    k("v_lshlrev_b32 v2, 11, v2")
    k("v_lshrrev_b32 v3, 4, v1")
    k("v_lshlrev_b32 v3, 3, v3")
    k("s_lshl_b32 s38, s25, 1")
    k("s_add_u32 s38, s38, s29")
    k("s_lshl_b32 s38, s38, 6")
    k("v_add3_u32 v2, v2, v3, s38")
    for fl in range(2):
        for e in range(2):
            r = R(fl, e)
            phi4(k, r, T)
            k("v_cvt_pk_bf16_f32 v4, v%d, v%d" % (r, r + 1))
            k("v_cvt_pk_bf16_f32 v5, v%d, v%d" % (r + 2, r + 3))
            k("s_mov_b32 s39, %d" % (fl * 16 * 2048))
            k("buffer_store_dwordx2 v[4:5], v2, s[12:15], s39 offen offset:%d" % (e * 32))
    KP = T + 8; VP = T + 16
    for e in range(2):
        for fl in range(2):
            r = R(fl, 2 + e)
            phi4(k, r, T)
            k("v_cvt_pk_bf16_f32 v%d, v%d, v%d" % (KP + e * 4 + fl * 2, r, r + 1))
            k("v_cvt_pk_bf16_f32 v%d, v%d, v%d" % (KP + e * 4 + fl * 2 + 1, r + 2, r + 3))
            r = R(fl, 4 + e)
            k("v_cvt_pk_bf16_f32 v%d, v%d, v%d" % (VP + e * 4 + fl * 2, r, r + 1))
            k("v_cvt_pk_bf16_f32 v%d, v%d, v%d" % (VP + e * 4 + fl * 2 + 1, r + 2, r + 3))
    ONE = T + 24
    for i in range(4):
        k("v_mov_b32 v%d, 0x3f803f80" % (ONE + i))
    k("s_barrier")
    k("v_lshlrev_b32 v3, 4, v0")
    k("v_mov_b32 v4, 0"); k("v_mov_b32 v5, 0"); k("v_mov_b32 v6, 0"); k("v_mov_b32 v7, 0")
    k("ds_write_b128 v3, v[4:7]")
    k("v_cmp_gt_u32 vcc, 16, v0")
    k("s_and_saveexec_b64 s[40:41], vcc")
    k("ds_write_b128 v3, v[4:7] offset:8192")
    k("s_mov_b64 exec, s[40:41]")
    for i in range(24):
        k("v_accvgpr_write_b32 a%d, 0" % i)
    k("s_nop 1")
    for e in range(2):
        for ee in range(2):
            k("v_mfma_f32_16x16x32_bf16 %s, %s, %s, %s" % (ar((e * 2 + ee) * 4, 4), vr(KP + e * 4, 4), vr(VP + ee * 4, 4), ar((e * 2 + ee) * 4, 4)))
        k("v_mfma_f32_16x16x32_bf16 %s, %s, %s, %s" % (ar(16 + e * 4, 4), vr(KP + e * 4, 4), vr(ONE, 4), ar(16 + e * 4, 4)))
    k("s_waitcnt lgkmcnt(0)")
    k("s_barrier")
    k("v_lshrrev_b32 v3, 4, v1")
    k("v_lshlrev_b32 v3, 9, v3")
    k("v_and_b32 v4, 15, v1")
    k("v_lshlrev_b32 v4, 2, v4")
    k("v_add_u32 v3, v3, v4")
    k("s_mul_i32 s38, s29, 4224")
    k("v_add_u32 v3, s38, v3")
    k("s_nop 7")
    for e in range(2):
        for ee in range(2):
            for i in range(4):
                k("v_accvgpr_read_b32 v5, a%d" % ((e * 2 + ee) * 4 + i))
                k("s_nop 0")
                k("ds_add_f32 v3, v5 offset:%d" % ((16 * e + i) * 128 + ee * 64))
    k("v_lshrrev_b32 v4, 4, v1")
    k("v_lshlrev_b32 v4, 4, v4")
    k("v_add_u32 v4, s38, v4")
    k("v_and_b32 v5, 15, v1")
    k("v_cmp_eq_u32 vcc, 0, v5")
    k("s_and_saveexec_b64 s[40:41], vcc")
    for e in range(2):
        for i in range(4):
            k("v_accvgpr_read_b32 v5, a%d" % (16 + e * 4 + i))
            k("s_nop 0")
            k("ds_add_f32 v4, v5 offset:%d" % (4096 + (16 * e + i) * 4))
    k("s_mov_b64 exec, s[40:41]")
    k("s_waitcnt lgkmcnt(0)")
    k("s_barrier")
    k.srd(16, 50, kvoff, KV_SET)
    k("s_lshl_b32 s38, s25, 1")
    k("s_mul_i32 s38, s38, 4224")
    k("s_lshl_b32 s39, s26, 8")
    k("v_lshlrev_b32 v3, 2, v1")
    k("v_add_u32 v3, s39, v3")
    k("v_add_u32 v4, s38, v3")
    for j in range(4):
        k("ds_read_b32 v%d, v3 offset:%d" % (5 + j, j * 2048))
    k("s_cmp_lg_u32 s26, 0")
    k("s_cbranch_scc1 L_at_done_%s" % k.name)
    k("ds_read_b32 v9, v3 offset:8192")
    k("s_waitcnt lgkmcnt(0)")
    k("buffer_atomic_add_f32 v9, v4, s[16:19], 0 offen offset:0")
    k.l.pop()
    k("v_add_u32 v10, 0x2000, v4")
    k("buffer_atomic_add_f32 v9, v10, s[16:19], 0 offen")
    k.label("L_at_done_%s" % k.name)
    k("s_waitcnt lgkmcnt(0)")
    for j in range(4):
        k("s_mov_b32 s39, %d" % (j * 2048))
        k("buffer_atomic_add_f32 v%d, v4, s[16:19], s39 offen" % (5 + j))
    k("s_waitcnt vmcnt(0)")

def o_kernel(name, kvoff):
    k = Kern(name)
    k.nvgpr = 128; k.accum_offset = 80; k.nsgpr = 48
    k("s_cmp_ge_u32 s2, 256")
    k("s_cbranch_scc1 L_end_%s" % name)
    k("s_load_dwordx2 s[6:7], s[0:1], %d" % WS_ARG)
    k("v_lshrrev_b32 v2, 6, v0")
    k("v_and_b32 v1, 63, v0")
    k("s_nop 0")
    k("v_readfirstlane_b32 s3, v2")
    k("s_lshl_b32 s4, s2, 2")
    k("s_add_u32 s4, s4, s3")
    k("s_and_b32 s5, s4, 31")
    k("s_lshr_b32 s4, s4, 5")
    k("s_waitcnt lgkmcnt(0)")
    k("s_add_u32 s8, s6, %d" % WS_PQ); k("s_addc_u32 s9, s7, 0"); k("s_mov_b32 s10, %d" % XB); k("s_mov_b32 s11, 0x00020000")
    k("s_add_u32 s12, s6, %d" % WS_O); k("s_addc_u32 s13, s7, 0"); k("s_mov_b32 s14, %d" % XB); k("s_mov_b32 s15, 0x00020000")
    k("s_add_u32 s16, s6, %d" % kvoff); k("s_addc_u32 s17, s7, 0"); k("s_mov_b32 s18, %d" % KV_SET); k("s_mov_b32 s19, 0x00020000")
    k("v_and_b32 v2, 15, v1")
    k("s_lshl_b32 s20, s4, 6")
    k("v_add_u32 v2, s20, v2")
    k("v_lshlrev_b32 v2, 11, v2")
    k("v_lshrrev_b32 v3, 4, v1")
    k("v_lshlrev_b32 v4, 4, v3")
    k("s_lshl_b32 s20, s5, 6")
    k("v_add3_u32 v2, v2, v4, s20")
    for fm in range(4):
        k("s_mov_b32 s21, %d" % (fm * 16 * 2048))
        k("buffer_load_dwordx4 %s, v2, s[8:11], s21 offen" % vr(20 + fm * 4, 4))
    k("s_mul_i32 s20, s5, 4224")
    k("v_lshlrev_b32 v4, 10, v3")
    k("v_and_b32 v5, 15, v1")
    k("v_lshlrev_b32 v5, 2, v5")
    k("v_add3_u32 v4, v4, v5, s20")
    for fe in range(2):
        for jj in range(8):
            k("buffer_load_dword v%d, v4, s[16:19], 0 offen offset:%d" % (40 + fe * 8 + jj, jj * 128 + fe * 64))
    k("v_lshlrev_b32 v5, 5, v3")
    k("v_add_u32 v5, s20, v5")
    k("v_add_u32 v5, 0x1000, v5")
    for jj in range(8):
        k("buffer_load_dword v%d, v5, s[16:19], 0 offen offset:%d" % (56 + jj, jj * 4))
    for i in range(48):
        k("v_accvgpr_write_b32 a%d, 0" % i)
    k("s_waitcnt vmcnt(0)")
    for fe in range(2):
        for j in range(4):
            k("v_cvt_pk_bf16_f32 v%d, v%d, v%d" % (64 + fe * 4 + j, 40 + fe * 8 + 2 * j, 41 + fe * 8 + 2 * j))
    for j in range(4):
        k("v_cvt_pk_bf16_f32 v%d, v%d, v%d" % (72 + j, 56 + 2 * j, 57 + 2 * j))
    k("s_nop 1")
    for fm in range(4):
        for fe in range(2):
            k("v_mfma_f32_16x16x32_bf16 %s, %s, %s, %s" % (ar((fm * 3 + fe) * 4, 4), vr(64 + fe * 4, 4), vr(20 + fm * 4, 4), ar((fm * 3 + fe) * 4, 4)))
        k("v_mfma_f32_16x16x32_bf16 %s, %s, %s, %s" % (ar((fm * 3 + 2) * 4, 4), vr(72, 4), vr(20 + fm * 4, 4), ar((fm * 3 + 2) * 4, 4)))
    k("s_nop 7"); k("s_nop 7")
    k("v_lshlrev_b32 v4, 3, v3")
    k("v_and_b32 v2, 15, v1")
    k("s_lshl_b32 s20, s4, 6")
    k("v_add_u32 v2, s20, v2")
    k("v_lshlrev_b32 v2, 11, v2")
    k("s_lshl_b32 s20, s5, 6")
    k("v_add3_u32 v2, v2, v4, s20")
    for fm in range(4):
        k("v_accvgpr_read_b32 v40, a%d" % ((fm * 3 + 2) * 4))
        k("s_nop 0")
        k("v_mov_b32 v41, v40")
        bf16r_pair(k, 40, 41, 42)
        k("v_add_f32 v40, 0x358637bd, v40")
        k("v_mov_b32 v41, v40")
        bf16r_pair(k, 40, 41, 42)
        k("v_rcp_f32 v40, v40")
        for fe in range(2):
            for i in range(4):
                k("v_accvgpr_read_b32 v%d, a%d" % (44 + i, (fm * 3 + fe) * 4 + i))
            k("s_nop 0")
            bf16r_pair(k, 44, 45, 42)
            bf16r_pair(k, 46, 47, 42)
            for i in range(4):
                k("v_mul_f32 v%d, v%d, v40" % (44 + i, 44 + i))
            k("v_cvt_pk_bf16_f32 v48, v44, v45")
            k("v_cvt_pk_bf16_f32 v49, v46, v47")
            k("s_mov_b32 s21, %d" % (fm * 16 * 2048))
            k("buffer_store_dwordx2 v[48:49], v2, s[12:15], s21 offen offset:%d" % (fe * 32))
    k("s_waitcnt vmcnt(0)")
    k.label("L_end_%s" % name)
    k("s_endpgm")
    return k

def epi_addr(k, c, ldc):
    k("v_and_b32 v2, 15, v1")
    k("s_lshl_b32 s38, s24, 7")
    k("s_lshl_b32 s39, s28, 6")
    k("s_add_u32 s38, s38, s39")
    k("s_lshl_b32 s39, s27, 5")
    k("s_add_u32 s38, s38, s39")
    k("v_add_u32 v2, s38, v2")
    k("s_mov_b32 s38, %d" % (ldc * 2))
    k("v_mul_lo_u32 v2, v2, s38")
    k("v_lshrrev_b32 v3, 4, v1")
    k("v_lshlrev_b32 v3, 3, v3")
    k("s_lshl_b32 s38, s29, 6")
    k("s_mul_i32 s39, s25, %d" % c.tn_stride)
    k("s_add_u32 s38, s38, s39")
    k("v_add3_u32 v2, v2, v3, s38")

def epi_resid(k, c):
    NF = k.NF
    T = V_FA + 8 * NF
    ldc = 1024
    if c.out_is_dout:
        k.srd(12, 52, 0, XB)
    else:
        k.srd(12, 50, c.out_off, XB)
    if c.res_is_input:
        k.srd(16, 54, 0, XB)
    else:
        k.srd(16, 50, c.res_off, XB)
    epi_addr(k, c, ldc)
    if c.bias_arg is not None:
        k.srd(20, 56, 0, 1024 * 2)
        k("v_lshrrev_b32 v3, 4, v1")
        k("v_lshlrev_b32 v3, 3, v3")
        k("s_lshl_b32 s38, s29, 6")
        k("s_mul_i32 s39, s25, %d" % c.tn_stride)
        k("s_add_u32 s38, s38, s39")
        k("v_add_u32 v3, s38, v3")
        for e in range(2):
            k("buffer_load_dwordx2 %s, v3, s[20:23], 0 offen offset:%d" % (vr(T + 16 + 2 * e, 2), e * 32))
    for fl in range(2):
        for e in range(2):
            k("s_mov_b32 s39, %d" % (fl * 16 * ldc * 2))
            k("buffer_load_dwordx2 %s, v2, s[16:19], s39 offen offset:%d" % (vr(T + (fl * 2 + e) * 2, 2), e * 32))
    k("s_waitcnt vmcnt(0)")
    for fl in range(2):
        for e in range(2):
            r = V_FA + (fl * NF + e) * 4
            bf16r_pair(k, r, r + 1, 4)
            bf16r_pair(k, r + 2, r + 3, 4)
            if c.bias_arg is not None:
                b = T + 16 + 2 * e
                k("v_lshlrev_b32 v4, 16, v%d" % b); k("v_add_f32 v%d, v4, v%d" % (r, r))
                k("v_and_b32 v4, 0xffff0000, v%d" % b); k("v_add_f32 v%d, v4, v%d" % (r + 1, r + 1))
                k("v_lshlrev_b32 v4, 16, v%d" % (b + 1)); k("v_add_f32 v%d, v4, v%d" % (r + 2, r + 2))
                k("v_and_b32 v4, 0xffff0000, v%d" % (b + 1)); k("v_add_f32 v%d, v4, v%d" % (r + 3, r + 3))
                bf16r_pair(k, r, r + 1, 4)
                bf16r_pair(k, r + 2, r + 3, 4)
            x = T + (fl * 2 + e) * 2
            k("v_lshlrev_b32 v4, 16, v%d" % x); k("v_add_f32 v%d, v4, v%d" % (r, r))
            k("v_and_b32 v4, 0xffff0000, v%d" % x); k("v_add_f32 v%d, v4, v%d" % (r + 1, r + 1))
            k("v_lshlrev_b32 v4, 16, v%d" % (x + 1)); k("v_add_f32 v%d, v4, v%d" % (r + 2, r + 2))
            k("v_and_b32 v4, 0xffff0000, v%d" % (x + 1)); k("v_add_f32 v%d, v4, v%d" % (r + 3, r + 3))
            k("v_cvt_pk_bf16_f32 v4, v%d, v%d" % (r, r + 1))
            k("v_cvt_pk_bf16_f32 v5, v%d, v%d" % (r + 2, r + 3))
            k("s_mov_b32 s39, %d" % (fl * 16 * ldc * 2))
            k("buffer_store_dwordx2 v[4:5], v2, s[12:15], s39 offen offset:%d" % (e * 32))
    k("s_waitcnt vmcnt(0)")

def epi_gelu(k, c):
    NF = k.NF
    T = V_FA + 8 * NF
    ldc = 3584
    k.srd(12, 50, WS_H, 2048 * 3584 * 2)
    k.srd(20, 56, 0, 3584 * 2)
    k("s_mov_b32 s62, 0x%x" % f32bits(0.044715))
    k("s_mov_b32 s63, 0x%x" % f32bits(-2 * 0.7978845608028654 * 1.4426950408889634))
    epi_addr(k, c, ldc)
    k("v_lshrrev_b32 v3, 4, v1")
    k("v_lshlrev_b32 v3, 3, v3")
    k("s_lshl_b32 s38, s29, 6")
    k("s_mul_i32 s39, s25, %d" % c.tn_stride)
    k("s_add_u32 s38, s38, s39")
    k("v_add_u32 v3, s38, v3")
    for f in range(NF):
        p, e = f // 2, f % 2
        k("buffer_load_dwordx2 %s, v3, s[20:23], 0 offen offset:%d" % (vr(T + 2 * f, 2), p * 128 + e * 32))
    k("s_waitcnt vmcnt(0)")
    U = T + 2 * NF
    for fl in range(2):
        for f in range(NF):
            p, e = f // 2, f % 2
            r = V_FA + (fl * NF + f) * 4
            b = T + 2 * f
            bf16r_pair(k, r, r + 1, 4)
            bf16r_pair(k, r + 2, r + 3, 4)
            k("v_lshlrev_b32 v4, 16, v%d" % b); k("v_add_f32 v%d, v4, v%d" % (r, r))
            k("v_and_b32 v4, 0xffff0000, v%d" % b); k("v_add_f32 v%d, v4, v%d" % (r + 1, r + 1))
            k("v_lshlrev_b32 v4, 16, v%d" % (b + 1)); k("v_add_f32 v%d, v4, v%d" % (r + 2, r + 2))
            k("v_and_b32 v4, 0xffff0000, v%d" % (b + 1)); k("v_add_f32 v%d, v4, v%d" % (r + 3, r + 3))
            bf16r_pair(k, r, r + 1, 4)
            bf16r_pair(k, r + 2, r + 3, 4)
            for i in range(4):
                k("v_mul_f32 v%d, v%d, v%d" % (U + i, r + i, r + i))
            for i in range(4):
                k("v_fma_f32 v%d, v%d, s62, 1.0" % (U + i, U + i))
            for i in range(4):
                k("v_mul_f32 v%d, v%d, v%d" % (U + i, U + i, r + i))
            for i in range(4):
                k("v_mul_f32 v%d, s63, v%d" % (U + i, U + i))
            for i in range(4):
                k("v_exp_f32 v%d, v%d" % (U + i, U + i))
            k("s_nop 0")
            for i in range(4):
                k("v_add_f32 v%d, 1.0, v%d" % (U + i, U + i))
            for i in range(4):
                k("v_rcp_f32 v%d, v%d" % (U + i, U + i))
            k("s_nop 0")
            for i in range(4):
                k("v_mul_f32 v%d, v%d, v%d" % (r + i, r + i, U + i))
            k("v_cvt_pk_bf16_f32 v4, v%d, v%d" % (r, r + 1))
            k("v_cvt_pk_bf16_f32 v5, v%d, v%d" % (r + 2, r + 3))
            k("s_mov_b32 s39, %d" % (fl * 16 * ldc * 2))
            k("buffer_store_dwordx2 v[4:5], v2, s[12:15], s39 offen offset:%d" % (p * 128 + e * 32))
    k("s_waitcnt vmcnt(0)")

import struct
def f32bits(x): return struct.unpack("<I", struct.pack("<f", x))[0]

def build():
    ks = []; ls = []
    def add(k, grid, blk, lds=0):
        ks.append(k); ls.append((k.name, grid, blk, lds))
    for layer in range(2):
        xin = (0, 0) if layer == 0 else (WS_ARG, WS_X2)
        kvoff = WS_KV + layer * KV_SET
        add(ln_kernel("ln1_%d_kernel" % layer, xin[0], xin[1], WS_XN, False, layer == 0), 512, 256)
        c = GemmCfg(a_arg=WS_ARG, a_off=WS_XN, lda=1024, a_bytes=XB, b_arg=8, b_off=0, ldb=3072, b_bytes=1024*3072*2,
                    K=1024, NP=3, S=3, tiles_n=16, tn_stride=128, p_stride=2048,
                    swap=[True, True, False, False, False, False], extra_ptrs=[(WS_ARG, 50)], epilogue=epi_qkv)
        c.kv_off = kvoff
        k = gemm_kernel("qkv_%d_kernel" % layer, c); add(k, 256, 512, k.lds)
        add(o_kernel("o_%d_kernel" % layer, kvoff), 256, 256)
        c = GemmCfg(a_arg=WS_ARG, a_off=WS_O, lda=1024, a_bytes=XB, b_arg=16, b_off=0, ldb=1024, b_bytes=1024*1024*2,
                    K=1024, NP=1, S=6, tiles_n=16, tn_stride=128, p_stride=0, swap=[True]*2,
                    extra_ptrs=[(WS_ARG, 50)] + ([(0, 54)] if layer == 0 else []), epilogue=epi_resid)
        c.out_is_dout = False; c.out_off = WS_X1 if layer == 0 else WS_X3
        c.res_is_input = (layer == 0); c.res_off = WS_X2; c.bias_arg = None
        k = gemm_kernel("proj_%d_kernel" % layer, c); add(k, 256, 512, k.lds)
        xm = WS_X1 if layer == 0 else WS_X3
        add(ln_kernel("ln2_%d_kernel" % layer, WS_ARG, xm, WS_XN, True, False), 512, 256)
        c = GemmCfg(a_arg=WS_ARG, a_off=WS_XN, lda=1024, a_bytes=XB, b_arg=32, b_off=0, ldb=3584, b_bytes=1024*3584*2,
                    K=1024, NP=4, S=3, tiles_n=14, tn_stride=512, p_stride=128, swap=[True]*8,
                    extra_ptrs=[(WS_ARG, 50), (40, 56)], epilogue=epi_gelu)
        k = gemm_kernel("mlp1_%d_kernel" % layer, c)
        add(k, 224, 512, k.lds)
        c = GemmCfg(a_arg=WS_ARG, a_off=WS_H, lda=3584, a_bytes=2048*3584*2, b_arg=48, b_off=0, ldb=1024, b_bytes=3584*1024*2,
                    K=3584, NP=1, S=6, tiles_n=16, tn_stride=128, p_stride=0, swap=[True]*2,
                    extra_ptrs=[(WS_ARG, 50), (64, 52), (56, 56)], epilogue=epi_resid)
        c.out_is_dout = (layer == 1); c.out_off = WS_X2
        c.res_is_input = False; c.res_off = xm; c.bias_arg = 56
        k = gemm_kernel("mlp2_%d_kernel" % layer, c); add(k, 256, 512, k.lds)
    return build_file(ks, ls)

if __name__ == "__main__":
    s = build()
    open(sys.argv[1] if len(sys.argv) > 1 else "full.s", "w").write(s)
```

```python
from asmlib import *

A_BYTES = 16384
P_BYTES = 8192

class GemmCfg:
    def __init__(self, **kw):
        self.a_arg = 0; self.a_off = 0; self.lda = 1024; self.a_bytes = 0
        self.b_arg = 8; self.b_off = 0; self.ldb = 3072; self.b_bytes = 0
        self.K = 1024; self.NP = 3; self.S = 3
        self.tiles_n = 16
        self.tn_stride = 64*2
        self.p_stride = 1024*2
        self.swap = None
        self.extra_ptrs = []
        self.epilogue = None
        self.split = 0.5
        self.abl = ''
        for k, v in kw.items():
            setattr(self, k, v)

S_TM, S_TN, S_W, S_KH, S_WM, S_WN = 24, 25, 26, 27, 28, 29
S_CNT, S_AOFF, S_BOFF, S_DBUF, S_RBUF = 30, 31, 32, 36, 37
S_T0 = 38
V_LANE = 1
V_DA0, V_DA1, V_DB = 10, 11, 12
V_AB, V_BB0, V_BB1 = 13, 14, 15
V_AA, V_BA0, V_BA1 = 16, 17, 18
V_FA = 20

def stamp(k, idx):
    if not getattr(k, "stamps", False): return
    k("s_memtime s[68:69]")
    k("s_waitcnt lgkmcnt(0)")
    k("v_mov_b32 v9, s68")
    k("buffer_store_dword v9, v19, s[64:67], 0 offen offset:%d" % (idx * 4))

def gemm_kernel(name, c):
    k = Kern(name)
    k.stamps = getattr(c, "stamps", False)
    NP = c.NP; NF = 2 * NP; S = c.S
    STAGE = A_BYTES + NP * P_BYTES
    NK = c.K // 64
    V_FB = V_FA + 32
    FA = lambda cs, fm: V_FA + cs * 16 + fm * 4
    FB = lambda cs, f: V_FB + cs * 4 * NF + f * 4
    V_ACC = V_FB + 8 * NF
    ACC = lambda fm, f: V_ACC + (fm * NF + f) * 4
    nv = V_ACC + 16 * NF
    nv = max(nv, 128)
    k.accum_offset = (nv + 3) // 4 * 4
    k.nvgpr = k.accum_offset
    k.lds = S * STAGE
    NT = 16 * c.tiles_n
    D = 2 + NP
    k.cfg = c; k.NF = NF; k.ACC = ACC; k.V_FB = V_FB; k.nv_frag_end = nv

    k("s_cmp_ge_u32 s2, %d" % NT)
    k("s_cbranch_scc1 L_end_%s" % name)
    k("s_load_dwordx2 s[40:41], s[0:1], %d" % c.a_arg)
    k("s_load_dwordx2 s[42:43], s[0:1], %d" % c.b_arg)
    for (off, sp) in c.extra_ptrs:
        k("s_load_dwordx2 %s, s[0:1], %d" % (sr(sp, 2), off))
    k("v_and_b32 v1, 63, v0")
    k("v_lshrrev_b32 v2, 6, v0")
    k("s_and_b32 s24, s2, 15")
    k("v_readfirstlane_b32 s26, v2")
    k("s_lshr_b32 s25, s2, 4")
    k("s_nop 1")
    k("s_lshr_b32 s27, s26, 2")
    k("s_and_b32 s28, s26, 1")
    k("s_bfe_u32 s29, s26, 0x10001")
    k("v_lshrrev_b32 v2, 3, v1")
    k("v_and_b32 v3, 7, v1")
    k("v_xor_b32 v3, v3, v2")
    k("s_lshl_b32 s38, s26, 4")
    k("s_lshl_b32 s39, s24, 7")
    k("s_add_u32 s38, s38, s39")
    k("v_add_u32 v4, s38, v2")
    k("s_mov_b32 s38, %d" % (c.lda * 2))
    k("v_mul_lo_u32 v4, v4, s38")
    k("v_lshlrev_b32 v3, 4, v3")
    k("v_add_u32 v10, v4, v3")
    k("v_add_u32 v11, %d, v10" % (8 * c.lda * 2))
    k("v_lshrrev_b32 v2, 3, v1")
    k("s_lshl_b32 s38, s26, 3")
    k("v_add_u32 v2, s38, v2")
    k("s_mov_b32 s38, %d" % (c.ldb * 2))
    k("v_mul_lo_u32 v2, v2, s38")
    k("v_bfe_u32 v3, v1, 1, 2")
    k("v_bfe_u32 v4, v1, 4, 1")
    k("s_and_b32 s38, s26, 1")
    k("s_lshl_b32 s38, s38, 1")
    k("v_or_b32 v4, s38, v4")
    k("v_xor_b32 v3, v3, v4")
    k("v_lshlrev_b32 v3, 5, v3")
    k("v_and_b32 v4, 1, v1")
    k("v_lshlrev_b32 v4, 4, v4")
    k("v_add3_u32 v12, v2, v3, v4")
    k("v_and_b32 v2, 15, v1")
    k("s_lshl_b32 s38, s28, 6")
    k("v_add_u32 v2, s38, v2")
    k("v_lshlrev_b32 v2, 7, v2")
    k("v_lshrrev_b32 v3, 4, v1")
    k("s_lshl_b32 s38, s27, 2")
    k("v_add_u32 v3, s38, v3")
    k("v_and_b32 v4, 7, v1")
    k("v_xor_b32 v3, v3, v4")
    k("v_lshlrev_b32 v3, 4, v3")
    k("v_add_u32 v13, v2, v3")
    k("v_lshrrev_b32 v2, 4, v1")
    k("v_lshlrev_b32 v2, 3, v2")
    k("v_bfe_u32 v3, v1, 2, 2")
    k("v_add_u32 v2, v2, v3")
    k("v_lshlrev_b32 v2, 7, v2")
    k("v_and_b32 v3, 3, v1")
    k("v_lshlrev_b32 v3, 3, v3")
    k("v_add_u32 v2, v2, v3")
    k("s_lshl_b32 s38, s27, 12")
    k("s_add_u32 s38, s38, %d" % A_BYTES)
    k("v_add_u32 v2, s38, v2")
    k("v_bfe_u32 v3, v1, 3, 1")
    k("v_bfe_u32 v4, v1, 4, 1")
    k("v_lshlrev_b32 v4, 1, v4")
    k("v_or_b32 v3, v3, v4")
    k("s_lshl_b32 s38, s29, 1")
    k("v_xor_b32 v4, s38, v3")
    k("v_lshlrev_b32 v4, 5, v4")
    k("v_add_u32 v14, v2, v4")
    k("v_xor_b32 v4, 32, v4")
    k("v_add_u32 v15, v2, v4")
    if k.stamps:
        k("s_load_dwordx2 s[64:65], s[0:1], 80")
        k("s_waitcnt lgkmcnt(0)")
        k("s_add_u32 s64, s64, %d" % (200 * 1024 * 1024 + getattr(c, "stamp_slot", 0) * 256 * 8 * 64))
        k("s_addc_u32 s65, s65, 0")
        k("s_mov_b32 s66, 0x1000000")
        k("s_mov_b32 s67, 0x00020000")
        k("s_lshl_b32 s38, s2, 3")
        k("s_add_u32 s38, s38, s26")
        k("s_lshl_b32 s38, s38, 6")
        k("v_mov_b32 v19, s38")
        stamp(k, 0)
    k("s_waitcnt lgkmcnt(0)")
    def srd(d, p, off, nbytes):
        if off:
            k("s_add_u32 s%d, s%d, %d" % (d, p, off))
            k("s_addc_u32 s%d, s%d, 0" % (d + 1, p + 1))
        else:
            k("s_mov_b32 s%d, s%d" % (d, p))
            k("s_mov_b32 s%d, s%d" % (d + 1, p + 1))
        k("s_mov_b32 s%d, %d" % (d + 2, nbytes))
        k("s_mov_b32 s%d, 0x00020000" % (d + 3))
    k.srd = srd
    srd(4, 40, c.a_off, c.a_bytes)
    srd(8, 42, c.b_off, c.b_bytes)
    k("s_mov_b32 s31, 0")
    k("s_mul_i32 s32, s25, %d" % c.tn_stride)
    for p in range(1, NP):
        k("s_add_u32 s%d, s32, %d" % (32 + p, p * c.p_stride))
    k("s_mov_b32 s36, 0")

    def dma_stage():
        lines = []
        for jj in range(2):
            lines.append(["s_add_u32 m0, s36, s44" if jj == 0 else "s_add_u32 m0, s36, s45",
                          "buffer_load_dwordx4 v%d, s[4:7], s31 offen lds" % (10 + jj)])
        for p in range(NP):
            lines.append(["s_add_u32 m0, s36, s%d" % (46 + p),
                          "buffer_load_dwordx4 v12, s[8:11], s%d offen lds" % (32 + p)])
        adv = ["s_add_u32 s31, s31, 128"]
        for p in range(NP):
            adv.append("s_add_u32 s%d, s%d, %d" % (32 + p, 32 + p, 64 * c.ldb * 2))
        adv += ["s_add_u32 s36, s36, %d" % STAGE, "s_cmp_ge_u32 s36, %d" % (S * STAGE), "s_cselect_b32 s36, 0, s36"]
        return lines, adv
    k("s_lshl_b32 s44, s26, 11")
    k("s_add_u32 s45, s44, 1024")
    k("s_lshl_b32 s46, s26, 10")
    k("s_add_u32 s46, s46, %d" % A_BYTES)
    for p in range(1, NP):
        k("s_add_u32 s%d, s46, %d" % (46 + p, p * P_BYTES))

    def emit_dma_all():
        lines, adv = dma_stage()
        for a, b in lines:
            k(a); k("s_nop 0"); k(b)
        for a in adv:
            k(a)

    def frag_reads(cs):
        out = []
        if 'R' in c.abl: return []
        for fm in range(4):
            out.append("ds_read_b128 %s, v16 offset:%d" % (vr(FA(cs, fm), 4), fm * 2048))
        for p in range(NP):
            for e in range(2):
                f = 2 * p + e
                for t in range(2):
                    out.append("ds_read_b64_tr_b16 %s, v%d offset:%d" % (vr(FB(cs, f) + 2 * t, 2), 17 + e, p * P_BYTES + t * 512))
        return out

    def set_read_addr():
        k("v_add_u32 v16, s37, v13")
        k("v_add_u32 v17, s37, v14")
        k("v_add_u32 v18, s37, v15")
        k("s_add_u32 s37, s37, %d" % STAGE)
        k("s_cmp_ge_u32 s37, %d" % (S * STAGE))
        k("s_cselect_b32 s37, 0, s37")

    def mfmas(cs):
        out = []
        if 'M' in c.abl: return ["s_nop 0"] * (4 * NF)
        for fm in range(4):
            for f in range(NF):
                a = vr(ACC(fm, f), 4)
                if c.swap[f]:
                    out.append("v_mfma_f32_16x16x32_bf16 %s, %s, %s, %s" % (a, vr(FB(cs, f), 4), vr(FA(cs, fm), 4), a))
                else:
                    out.append("v_mfma_f32_16x16x32_bf16 %s, %s, %s, %s" % (a, vr(FA(cs, fm), 4), vr(FB(cs, f), 4), a))
        return out

    for st in range(min(S, NK)):
        emit_dma_all()
        if st == 0:
            for i in range(16 * NF):
                k("v_mov_b32 v%d, 0" % (V_ACC + i))
    stamp(k, 1)
    k("s_mov_b32 s37, 0")
    k("s_waitcnt vmcnt(%d)" % ((min(S, NK) - 1) * D))
    k("s_barrier")
    stamp(k, 2)
    set_read_addr()
    for ln in frag_reads(0):
        k(ln)

    def emit_iter(j, cs, do_dma, do_next, vmw):
        ms = mfmas(cs)
        h = int(len(ms) * c.split)
        k("s_waitcnt lgkmcnt(0)")
        for ln in ms[:h]:
            k(ln)
        if do_next:
            k("s_waitcnt vmcnt(%d)" % vmw)
            k("s_barrier")
            set_read_addr()
            for ln in frag_reads(1 - cs):
                k(ln)
        rest = ms[h:]
        if do_dma and 'D' not in c.abl:
            lines, adv = dma_stage()
            step = max(1, len(rest) // (len(lines) + 1))
            ri = 0
            for (a, b) in lines:
                k(a)
                k(rest[ri]); ri += 1
                k(b)
                for _ in range(step - 1):
                    if ri < len(rest):
                        k(rest[ri]); ri += 1
            for ln in rest[ri:]:
                k(ln)
            for a in adv:
                k(a)
        else:
            for ln in rest:
                k(ln)

    nmain = max(0, NK - S)
    nmain -= nmain % 2
    if nmain > 0:
        k("s_mov_b32 s30, %d" % (nmain // 2))
        k.label("L_loop_%s" % name)
        emit_iter(0, 0, True, True, (S - 2) * D)
        emit_iter(1, 1, True, True, (S - 2) * D)
        k("s_sub_u32 s30, s30, 1")
        k("s_cmp_lg_u32 s30, 0")
        k("s_cbranch_scc1 L_loop_%s" % name)
    for j in range(nmain, NK):
        issued_last = min(j + S - 1, NK - 1)
        vmw = max(0, issued_last - (j + 1)) * D
        emit_iter(j, j % 2, j + S < NK, j + 1 < NK, vmw)

    stamp(k, 3)
    k("s_waitcnt vmcnt(0) lgkmcnt(0)")
    k("s_barrier")
    REG = 8 * NF * 256
    k("s_xor_b32 s38, s26, 4")
    k("s_mul_i32 s38, s38, %d" % REG)
    k("v_lshlrev_b32 v2, 4, v1")
    k("v_add_u32 v2, s38, v2")
    k("s_nop 7")
    k("s_cmp_eq_u32 s27, 0")
    k("s_cbranch_scc0 L_give1_%s" % name)
    for idx, (fm, f) in enumerate([(fm, f) for fm in (2, 3) for f in range(NF)]):
        k("ds_write_b128 v2, %s offset:%d" % (vr(ACC(fm, f), 4), idx * 1024))
    k("s_branch L_give_done_%s" % name)
    k.label("L_give1_%s" % name)
    for idx, (fm, f) in enumerate([(fm, f) for fm in (0, 1) for f in range(NF)]):
        k("ds_write_b128 v2, %s offset:%d" % (vr(ACC(fm, f), 4), idx * 1024))
    k.label("L_give_done_%s" % name)
    k("s_waitcnt lgkmcnt(0)")
    k("s_barrier")
    k("s_mul_i32 s38, s26, %d" % REG)
    k("v_lshlrev_b32 v2, 4, v1")
    k("v_add_u32 v2, s38, v2")
    k("s_mul_i32 s38, s27, %d" % (2 * NF * 4))
    k("s_cmp_eq_u32 s27, 0")
    k("s_cbranch_scc0 L_keep1_%s" % name)
    def keep(fms):
        R = V_FA
        for idx, (fm, f) in enumerate([(fm, f) for fm in fms for f in range(NF)]):
            k("ds_read_b128 %s, v2 offset:%d" % (vr(R + idx * 4, 4), idx * 1024))
        k("s_waitcnt lgkmcnt(0)")
        T = V_FA + 8 * NF
        assert T + 4 <= k.accum_offset or True
        for idx, (fm, f) in enumerate([(fm, f) for fm in fms for f in range(NF)]):
            for i in range(4):
                k("v_add_f32 v%d, v%d, v%d" % (R + idx * 4 + i, ACC(fm, f) + i, R + idx * 4 + i))
    keep((0, 1))
    k("s_branch L_keep_done_%s" % name)
    k.label("L_keep1_%s" % name)
    keep((2, 3))
    k.label("L_keep_done_%s" % name)
    stamp(k, 4)
    c.epilogue(k, c)
    stamp(k, 5)
    k("s_waitcnt vmcnt(0)")
    k.label("L_end_%s" % name)
    k("s_endpgm")
    return k
```

```python
import sys
from asmlib import *
from gemm import *

MB = 1024 * 1024
WS_XN = 0 * MB
WS_PQ = 4 * MB
WS_O = 8 * MB
WS_X1 = 12 * MB
WS_X2 = 16 * MB
WS_X3 = 20 * MB
WS_H = 24 * MB
WS_KV = 40 * MB
KV_SET = 32 * 1056 * 4
XB = 2048 * 1024 * 2
WS_ARG = 80

def bf16r_pair(k, a, b, t):
    k("v_cvt_pk_bf16_f32 v%d, v%d, v%d" % (t, a, b))
    k("v_lshlrev_b32 v%d, 16, v%d" % (a, t))
    k("v_and_b32 v%d, 0xffff0000, v%d" % (b, t))

def wave_sum(k, v, t):
    k("s_nop 1")
    k("v_add_f32_dpp v%d, v%d, v%d quad_perm:[1,0,3,2] row_mask:0xf bank_mask:0xf" % (v, v, v))
    k("s_nop 1")
    k("v_add_f32_dpp v%d, v%d, v%d quad_perm:[2,3,0,1] row_mask:0xf bank_mask:0xf" % (v, v, v))
    k("s_nop 1")
    k("v_add_f32_dpp v%d, v%d, v%d row_ror:4 row_mask:0xf bank_mask:0xf" % (v, v, v))
    k("s_nop 1")
    k("v_add_f32_dpp v%d, v%d, v%d row_ror:8 row_mask:0xf bank_mask:0xf" % (v, v, v))
    k("v_mov_b32 v%d, v%d" % (t, v))
    k("s_nop 1")
    k("v_permlane16_swap_b32 v%d, v%d" % (v, t))
    k("s_nop 1")
    k("v_add_f32 v%d, v%d, v%d" % (v, v, t))
    k("v_mov_b32 v%d, v%d" % (t, v))
    k("s_nop 1")
    k("v_permlane32_swap_b32 v%d, v%d" % (v, t))
    k("s_nop 1")
    k("v_add_f32 v%d, v%d, v%d" % (v, v, t))

def ln_kernel(name, src_arg, src_off, dst_off, double, zero_kv):
    k = Kern(name)
    k.nvgpr = 64; k.accum_offset = 64; k.nsgpr = 48
    k("s_cmp_ge_u32 s2, 512")
    k("s_cbranch_scc1 L_end_%s" % name)
    k("s_load_dwordx2 s[4:5], s[0:1], %d" % src_arg)
    k("s_load_dwordx2 s[6:7], s[0:1], %d" % WS_ARG)
    k("v_lshrrev_b32 v2, 6, v0")
    k("v_and_b32 v1, 63, v0")
    k("s_lshl_b32 s3, s2, 2")
    k("v_add_u32 v2, s3, v2")
    k("v_lshlrev_b32 v2, 11, v2")
    k("v_lshlrev_b32 v3, 4, v1")
    k("v_add_u32 v2, v2, v3")
    k("s_waitcnt lgkmcnt(0)")
    if src_off:
        k("s_add_u32 s8, s4, %d" % src_off); k("s_addc_u32 s9, s5, 0")
    else:
        k("s_mov_b32 s8, s4"); k("s_mov_b32 s9, s5")
    k("s_mov_b32 s10, %d" % XB); k("s_mov_b32 s11, 0x00020000")
    k("s_add_u32 s12, s6, %d" % dst_off); k("s_addc_u32 s13, s7, 0")
    k("s_mov_b32 s14, %d" % XB); k("s_mov_b32 s15, 0x00020000")
    k("buffer_load_dwordx4 v[4:7], v2, s[8:11], 0 offen")
    k("buffer_load_dwordx4 v[8:11], v2, s[8:11], 0 offen offset:1024")
    if zero_kv:
        k("s_cmp_ge_u32 s2, 66")
        k("s_cbranch_scc1 L_nz_%s" % name)
        k("s_add_u32 s16, s6, %d" % WS_KV); k("s_addc_u32 s17, s7, 0")
        k("s_mov_b32 s18, %d" % (2 * KV_SET)); k("s_mov_b32 s19, 0x00020000")
        k("s_lshl_b32 s3, s2, 12")
        k("v_lshlrev_b32 v12, 4, v0")
        k("v_add_u32 v12, s3, v12")
        k("v_mov_b32 v14, 0"); k("v_mov_b32 v15, 0"); k("v_mov_b32 v16, 0"); k("v_mov_b32 v17, 0")
        k("buffer_store_dwordx4 v[14:17], v12, s[16:19], 0 offen")
        k.label("L_nz_%s" % name)
    k("s_waitcnt vmcnt(0)")
    for i in range(8):
        k("v_lshlrev_b32 v%d, 16, v%d" % (20 + 2 * i, 4 + i))
        k("v_and_b32 v%d, 0xffff0000, v%d" % (21 + 2 * i, 4 + i))
    for rep in range(2 if double else 1):
        k("v_add_f32 v40, v20, v21")
        for i in range(2, 16):
            k("v_add_f32 v40, v40, v%d" % (20 + i))
        wave_sum(k, 40, 41)
        k("v_mul_f32 v40, 0x3a800000, v40")
        k("v_sub_f32 v42, v20, v40")
        k("v_mul_f32 v43, v42, v42")
        for i in range(1, 16):
            k("v_sub_f32 v42, v%d, v40" % (20 + i))
            k("v_fmac_f32 v43, v42, v42")
        wave_sum(k, 43, 41)
        k("v_mul_f32 v43, 0x3a800000, v43")
        bf16r_pair(k, 40, 43, 41)
        k("v_add_f32 v43, 0x3727c5ac, v43")
        k("v_mov_b32 v44, v43")
        bf16r_pair(k, 43, 44, 41)
        k("v_sqrt_f32 v43, v43")
        k("s_nop 0")
        k("v_mov_b32 v44, v43")
        bf16r_pair(k, 43, 44, 41)
        k("v_rcp_f32 v43, v43")
        k("s_nop 0")
        for i in range(0, 16, 2):
            k("v_sub_f32 v%d, v%d, v40" % (20 + i, 20 + i))
            k("v_sub_f32 v%d, v%d, v40" % (21 + i, 21 + i))
            bf16r_pair(k, 20 + i, 21 + i, 41)
            k("v_mul_f32 v%d, v%d, v43" % (20 + i, 20 + i))
            k("v_mul_f32 v%d, v%d, v43" % (21 + i, 21 + i))
            if rep == 0 and double:
                bf16r_pair(k, 20 + i, 21 + i, 41)
    for i in range(8):
        k("v_cvt_pk_bf16_f32 v%d, v%d, v%d" % (4 + i, 20 + 2 * i, 21 + 2 * i))
    k("buffer_store_dwordx4 v[4:7], v2, s[12:15], 0 offen")
    k("buffer_store_dwordx4 v[8:11], v2, s[12:15], 0 offen offset:1024")
    k("s_waitcnt vmcnt(0)")
    k.label("L_end_%s" % name)
    k("s_endpgm")
    return k

LOG2E = 0x3fb8aa3b
def phi4(k, R, T):
    bf16r_pair(k, R, R + 1, T)
    bf16r_pair(k, R + 2, R + 3, T)
    for i in range(4):
        k("v_mul_f32 v%d, 0x%x, v%d" % (T + i, LOG2E, R + i))
    for i in range(4):
        k("v_exp_f32 v%d, v%d" % (T + i, T + i))
    for i in range(4):
        k("v_cmp_lt_f32 vcc, 0, v%d" % (R + i))
        k("v_add_f32 v%d, 1.0, v%d" % (R + i, R + i))
        k("s_nop 0")
        k("v_cndmask_b32 v%d, v%d, v%d, vcc" % (R + i, T + i, R + i))
    bf16r_pair(k, R, R + 1, T)
    bf16r_pair(k, R + 2, R + 3, T)
    for i in range(4):
        k("v_add_f32 v%d, 0x358637bd, v%d" % (R + i, R + i))

def epi_qkv(k, c):
    NF = k.NF
    kvoff = c.kv_off
    T = V_FA + 8 * NF
    R = lambda fl, f: V_FA + (fl * NF + f) * 4
    k.srd(12, 50, WS_PQ, XB)
    k("v_and_b32 v2, 15, v1")
    k("s_lshl_b32 s38, s24, 7")
    k("s_lshl_b32 s39, s28, 6")
    k("s_add_u32 s38, s38, s39")
    k("s_lshl_b32 s39, s27, 5")
    k("s_add_u32 s38, s38, s39")
    k("v_add_u32 v2, s38, v2")
    k("v_lshlrev_b32 v2, 11, v2")
    k("v_lshrrev_b32 v3, 4, v1")
    k("v_lshlrev_b32 v3, 3, v3")
    k("s_lshl_b32 s38, s25, 1")
    k("s_add_u32 s38, s38, s29")
    k("s_lshl_b32 s38, s38, 6")
    k("v_add3_u32 v2, v2, v3, s38")
    for fl in range(2):
        for e in range(2):
            r = R(fl, e)
            phi4(k, r, T)
            k("v_cvt_pk_bf16_f32 v4, v%d, v%d" % (r, r + 1))
            k("v_cvt_pk_bf16_f32 v5, v%d, v%d" % (r + 2, r + 3))
            k("s_mov_b32 s39, %d" % (fl * 16 * 2048))
            k("buffer_store_dwordx2 v[4:5], v2, s[12:15], s39 offen offset:%d" % (e * 32))
    KP = T + 8; VP = T + 16
    for e in range(2):
        for fl in range(2):
            r = R(fl, 2 + e)
            phi4(k, r, T)
            k("v_cvt_pk_bf16_f32 v%d, v%d, v%d" % (KP + e * 4 + fl * 2, r, r + 1))
            k("v_cvt_pk_bf16_f32 v%d, v%d, v%d" % (KP + e * 4 + fl * 2 + 1, r + 2, r + 3))
            r = R(fl, 4 + e)
            k("v_cvt_pk_bf16_f32 v%d, v%d, v%d" % (VP + e * 4 + fl * 2, r, r + 1))
            k("v_cvt_pk_bf16_f32 v%d, v%d, v%d" % (VP + e * 4 + fl * 2 + 1, r + 2, r + 3))
    stamp(k, 6)
    ONE = T + 24
    for i in range(4):
        k("v_mov_b32 v%d, 0x3f803f80" % (ONE + i))
    KVR = T + 28
    for i in range(24):
        k("v_mov_b32 v%d, 0" % (KVR + i))
    k("s_nop 1")
    for e in range(2):
        for ee in range(2):
            q = KVR + (e * 2 + ee) * 4
            k("v_mfma_f32_16x16x32_bf16 %s, %s, %s, %s" % (vr(q, 4), vr(KP + e * 4, 4), vr(VP + ee * 4, 4), vr(q, 4)))
        q = KVR + (4 + e) * 4
        k("v_mfma_f32_16x16x32_bf16 %s, %s, %s, %s" % (vr(q, 4), vr(KP + e * 4, 4), vr(ONE, 4), vr(q, 4)))
    k("s_barrier")
    k("s_mul_i32 s38, s26, 6144")
    k("v_lshlrev_b32 v3, 4, v1")
    k("v_add_u32 v3, s38, v3")
    k("s_nop 7")
    for q in range(6):
        k("ds_write_b128 v3, %s offset:%d" % (vr(KVR + q * 4, 4), q * 1024))
    k("s_waitcnt lgkmcnt(0)")
    k("s_barrier")
    stamp(k, 7)
    k("s_lshl_b32 s38, s28, 1")
    k("s_add_u32 s38, s38, s27")
    k("s_lshl_b32 s39, s29, 1")
    k("s_mul_i32 s39, s39, 6144")
    k("s_lshl_b32 s40, s38, 10")
    k("s_add_u32 s39, s39, s40")
    k("v_lshlrev_b32 v3, 4, v1")
    k("v_add_u32 v3, s39, v3")
    k.srd(16, 50, kvoff, KV_SET)
    k("s_lshl_b32 s40, s25, 1")
    k("s_add_u32 s40, s40, s29")
    k("s_mul_i32 s40, s40, 4224")
    k("v_lshrrev_b32 v4, 4, v1")
    k("v_lshlrev_b32 v4, 9, v4")
    k("v_and_b32 v5, 15, v1")
    k("v_lshlrev_b32 v5, 2, v5")
    k("v_add_u32 v4, v4, v5")
    k("s_lshr_b32 s41, s38, 1")
    k("s_lshl_b32 s41, s41, 11")
    k("s_add_u32 s40, s40, s41")
    k("s_and_b32 s41, s38, 1")
    k("s_lshl_b32 s41, s41, 6")
    k("s_add_u32 s41, s40, s41")
    k("v_add_u32 v4, s41, v4")
    offs = [0, 6144, 4 * 6144, 5 * 6144]
    for j in range(4):
        k("ds_read_b128 %s, v3 offset:%d" % (vr(KVR + j * 4, 4), offs[j]))
    k("s_waitcnt lgkmcnt(0)")
    for i in range(4):
        k("v_add_f32 v%d, v%d, v%d" % (KVR + i, KVR + i, KVR + 4 + i))
        k("v_add_f32 v%d, v%d, v%d" % (KVR + 8 + i, KVR + 8 + i, KVR + 12 + i))
        k("v_add_f32 v%d, v%d, v%d" % (KVR + i, KVR + i, KVR + 8 + i))
    for i in range(4):
        k("buffer_atomic_add_f32 v%d, v4, s[16:19], 0 offen offset:%d" % (KVR + i, i * 128))
    k("s_cmp_ge_u32 s38, 2")
    k("s_cbranch_scc1 L_at_done_%s" % k.name)
    for j in range(4):
        k("ds_read_b128 %s, v3 offset:%d" % (vr(KVR + j * 4, 4), offs[j] + 4096))
    k("s_lshl_b32 s41, s38, 6")
    k("s_add_u32 s41, s41, s40")
    k("s_add_u32 s41, s41, 4096")
    k("v_lshrrev_b32 v4, 4, v1")
    k("v_lshlrev_b32 v4, 4, v4")
    k("v_add_u32 v4, s41, v4")
    k("s_waitcnt lgkmcnt(0)")
    for i in range(4):
        k("v_add_f32 v%d, v%d, v%d" % (KVR + i, KVR + i, KVR + 4 + i))
        k("v_add_f32 v%d, v%d, v%d" % (KVR + 8 + i, KVR + 8 + i, KVR + 12 + i))
        k("v_add_f32 v%d, v%d, v%d" % (KVR + i, KVR + i, KVR + 8 + i))
    k("v_and_b32 v5, 15, v1")
    k("v_cmp_eq_u32 vcc, 0, v5")
    k("s_and_saveexec_b64 s[42:43], vcc")
    for i in range(4):
        k("buffer_atomic_add_f32 v%d, v4, s[16:19], 0 offen offset:%d" % (KVR + i, i * 4))
    k("s_mov_b64 exec, s[42:43]")
    k.label("L_at_done_%s" % k.name)
    k("s_waitcnt vmcnt(0)")

def o_kernel(name, kvoff):
    k = Kern(name)
    k.nvgpr = 128; k.accum_offset = 80; k.nsgpr = 48
    k("s_cmp_ge_u32 s2, 256")
    k("s_cbranch_scc1 L_end_%s" % name)
    k("s_load_dwordx2 s[6:7], s[0:1], %d" % WS_ARG)
    k("v_lshrrev_b32 v2, 6, v0")
    k("v_and_b32 v1, 63, v0")
    k("s_nop 0")
    k("v_readfirstlane_b32 s3, v2")
    k("s_lshl_b32 s4, s2, 2")
    k("s_add_u32 s4, s4, s3")
    k("s_and_b32 s5, s4, 31")
    k("s_lshr_b32 s4, s4, 5")
    k("s_waitcnt lgkmcnt(0)")
    k("s_add_u32 s8, s6, %d" % WS_PQ); k("s_addc_u32 s9, s7, 0"); k("s_mov_b32 s10, %d" % XB); k("s_mov_b32 s11, 0x00020000")
    k("s_add_u32 s12, s6, %d" % WS_O); k("s_addc_u32 s13, s7, 0"); k("s_mov_b32 s14, %d" % XB); k("s_mov_b32 s15, 0x00020000")
    k("s_add_u32 s16, s6, %d" % kvoff); k("s_addc_u32 s17, s7, 0"); k("s_mov_b32 s18, %d" % KV_SET); k("s_mov_b32 s19, 0x00020000")
    k("v_and_b32 v2, 15, v1")
    k("s_lshl_b32 s20, s4, 6")
    k("v_add_u32 v2, s20, v2")
    k("v_lshlrev_b32 v2, 11, v2")
    k("v_lshrrev_b32 v3, 4, v1")
    k("v_lshlrev_b32 v4, 4, v3")
    k("s_lshl_b32 s20, s5, 6")
    k("v_add3_u32 v2, v2, v4, s20")
    for fm in range(4):
        k("s_mov_b32 s21, %d" % (fm * 16 * 2048))
        k("buffer_load_dwordx4 %s, v2, s[8:11], s21 offen" % vr(20 + fm * 4, 4))
    k("s_mul_i32 s20, s5, 4224")
    k("v_lshlrev_b32 v4, 10, v3")
    k("v_and_b32 v5, 15, v1")
    k("v_lshlrev_b32 v5, 2, v5")
    k("v_add3_u32 v4, v4, v5, s20")
    for fe in range(2):
        for jj in range(8):
            k("buffer_load_dword v%d, v4, s[16:19], 0 offen offset:%d" % (40 + fe * 8 + jj, jj * 128 + fe * 64))
    k("v_lshlrev_b32 v5, 5, v3")
    k("v_add_u32 v5, s20, v5")
    k("v_add_u32 v5, 0x1000, v5")
    for jj in range(8):
        k("buffer_load_dword v%d, v5, s[16:19], 0 offen offset:%d" % (56 + jj, jj * 4))
    for i in range(48):
        k("v_accvgpr_write_b32 a%d, 0" % i)
    k("s_waitcnt vmcnt(0)")
    for fe in range(2):
        for j in range(4):
            k("v_cvt_pk_bf16_f32 v%d, v%d, v%d" % (64 + fe * 4 + j, 40 + fe * 8 + 2 * j, 41 + fe * 8 + 2 * j))
    for j in range(4):
        k("v_cvt_pk_bf16_f32 v%d, v%d, v%d" % (72 + j, 56 + 2 * j, 57 + 2 * j))
    k("s_nop 1")
    for fm in range(4):
        for fe in range(2):
            k("v_mfma_f32_16x16x32_bf16 %s, %s, %s, %s" % (ar((fm * 3 + fe) * 4, 4), vr(64 + fe * 4, 4), vr(20 + fm * 4, 4), ar((fm * 3 + fe) * 4, 4)))
        k("v_mfma_f32_16x16x32_bf16 %s, %s, %s, %s" % (ar((fm * 3 + 2) * 4, 4), vr(72, 4), vr(20 + fm * 4, 4), ar((fm * 3 + 2) * 4, 4)))
    k("s_nop 7"); k("s_nop 7")
    k("v_lshlrev_b32 v4, 3, v3")
    k("v_and_b32 v2, 15, v1")
    k("s_lshl_b32 s20, s4, 6")
    k("v_add_u32 v2, s20, v2")
    k("v_lshlrev_b32 v2, 11, v2")
    k("s_lshl_b32 s20, s5, 6")
    k("v_add3_u32 v2, v2, v4, s20")
    for fm in range(4):
        k("v_accvgpr_read_b32 v40, a%d" % ((fm * 3 + 2) * 4))
        k("s_nop 0")
        k("v_mov_b32 v41, v40")
        bf16r_pair(k, 40, 41, 42)
        k("v_add_f32 v40, 0x358637bd, v40")
        k("v_mov_b32 v41, v40")
        bf16r_pair(k, 40, 41, 42)
        k("v_rcp_f32 v40, v40")
        for fe in range(2):
            for i in range(4):
                k("v_accvgpr_read_b32 v%d, a%d" % (44 + i, (fm * 3 + fe) * 4 + i))
            k("s_nop 0")
            bf16r_pair(k, 44, 45, 42)
            bf16r_pair(k, 46, 47, 42)
            for i in range(4):
                k("v_mul_f32 v%d, v%d, v40" % (44 + i, 44 + i))
            k("v_cvt_pk_bf16_f32 v48, v44, v45")
            k("v_cvt_pk_bf16_f32 v49, v46, v47")
            k("s_mov_b32 s21, %d" % (fm * 16 * 2048))
            k("buffer_store_dwordx2 v[48:49], v2, s[12:15], s21 offen offset:%d" % (fe * 32))
    k("s_waitcnt vmcnt(0)")
    k.label("L_end_%s" % name)
    k("s_endpgm")
    return k

def epi_addr(k, c, ldc):
    k("v_and_b32 v2, 15, v1")
    k("s_lshl_b32 s38, s24, 7")
    k("s_lshl_b32 s39, s28, 6")
    k("s_add_u32 s38, s38, s39")
    k("s_lshl_b32 s39, s27, 5")
    k("s_add_u32 s38, s38, s39")
    k("v_add_u32 v2, s38, v2")
    k("s_mov_b32 s38, %d" % (ldc * 2))
    k("v_mul_lo_u32 v2, v2, s38")
    k("v_lshrrev_b32 v3, 4, v1")
    k("v_lshlrev_b32 v3, 3, v3")
    k("s_lshl_b32 s38, s29, 6")
    k("s_mul_i32 s39, s25, %d" % c.tn_stride)
    k("s_add_u32 s38, s38, s39")
    k("v_add3_u32 v2, v2, v3, s38")

def epi_resid(k, c):
    NF = k.NF
    T = V_FA + 8 * NF
    ldc = 1024
    if c.out_is_dout:
        k.srd(12, 52, 0, XB)
    else:
        k.srd(12, 50, c.out_off, XB)
    if c.res_is_input:
        k.srd(16, 54, 0, XB)
    else:
        k.srd(16, 50, c.res_off, XB)
    epi_addr(k, c, ldc)
    if c.bias_arg is not None:
        k.srd(20, 56, 0, 1024 * 2)
        k("v_lshrrev_b32 v3, 4, v1")
        k("v_lshlrev_b32 v3, 3, v3")
        k("s_lshl_b32 s38, s29, 6")
        k("s_mul_i32 s39, s25, %d" % c.tn_stride)
        k("s_add_u32 s38, s38, s39")
        k("v_add_u32 v3, s38, v3")
        for e in range(2):
            k("buffer_load_dwordx2 %s, v3, s[20:23], 0 offen offset:%d" % (vr(T + 16 + 2 * e, 2), e * 32))
    for fl in range(2):
        for e in range(2):
            k("s_mov_b32 s39, %d" % (fl * 16 * ldc * 2))
            k("buffer_load_dwordx2 %s, v2, s[16:19], s39 offen offset:%d" % (vr(T + (fl * 2 + e) * 2, 2), e * 32))
    k("s_waitcnt vmcnt(0)")
    for fl in range(2):
        for e in range(2):
            r = V_FA + (fl * NF + e) * 4
            bf16r_pair(k, r, r + 1, 4)
            bf16r_pair(k, r + 2, r + 3, 4)
            if c.bias_arg is not None:
                b = T + 16 + 2 * e
                k("v_lshlrev_b32 v4, 16, v%d" % b); k("v_add_f32 v%d, v4, v%d" % (r, r))
                k("v_and_b32 v4, 0xffff0000, v%d" % b); k("v_add_f32 v%d, v4, v%d" % (r + 1, r + 1))
                k("v_lshlrev_b32 v4, 16, v%d" % (b + 1)); k("v_add_f32 v%d, v4, v%d" % (r + 2, r + 2))
                k("v_and_b32 v4, 0xffff0000, v%d" % (b + 1)); k("v_add_f32 v%d, v4, v%d" % (r + 3, r + 3))
                bf16r_pair(k, r, r + 1, 4)
                bf16r_pair(k, r + 2, r + 3, 4)
            x = T + (fl * 2 + e) * 2
            k("v_lshlrev_b32 v4, 16, v%d" % x); k("v_add_f32 v%d, v4, v%d" % (r, r))
            k("v_and_b32 v4, 0xffff0000, v%d" % x); k("v_add_f32 v%d, v4, v%d" % (r + 1, r + 1))
            k("v_lshlrev_b32 v4, 16, v%d" % (x + 1)); k("v_add_f32 v%d, v4, v%d" % (r + 2, r + 2))
            k("v_and_b32 v4, 0xffff0000, v%d" % (x + 1)); k("v_add_f32 v%d, v4, v%d" % (r + 3, r + 3))
            k("v_cvt_pk_bf16_f32 v4, v%d, v%d" % (r, r + 1))
            k("v_cvt_pk_bf16_f32 v5, v%d, v%d" % (r + 2, r + 3))
            k("s_mov_b32 s39, %d" % (fl * 16 * ldc * 2))
            k("buffer_store_dwordx2 v[4:5], v2, s[12:15], s39 offen offset:%d" % (e * 32))
    k("s_waitcnt vmcnt(0)")

def epi_gelu(k, c):
    NF = k.NF
    T = V_FA + 8 * NF
    ldc = 3584
    k.srd(12, 50, WS_H, 2048 * 3584 * 2)
    k.srd(20, 56, 0, 3584 * 2)
    k("s_mov_b32 s62, 0x%x" % f32bits(0.044715))
    k("s_mov_b32 s63, 0x%x" % f32bits(-2 * 0.7978845608028654 * 1.4426950408889634))
    epi_addr(k, c, ldc)
    k("v_lshrrev_b32 v3, 4, v1")
    k("v_lshlrev_b32 v3, 3, v3")
    k("s_lshl_b32 s38, s29, 6")
    k("s_mul_i32 s39, s25, %d" % c.tn_stride)
    k("s_add_u32 s38, s38, s39")
    k("v_add_u32 v3, s38, v3")
    for f in range(NF):
        p, e = f // 2, f % 2
        k("buffer_load_dwordx2 %s, v3, s[20:23], 0 offen offset:%d" % (vr(T + 2 * f, 2), p * 128 + e * 32))
    k("s_waitcnt vmcnt(0)")
    U = T + 2 * NF
    for fl in range(2):
        for f in range(NF):
            p, e = f // 2, f % 2
            r = V_FA + (fl * NF + f) * 4
            b = T + 2 * f
            bf16r_pair(k, r, r + 1, 4)
            bf16r_pair(k, r + 2, r + 3, 4)
            k("v_lshlrev_b32 v4, 16, v%d" % b); k("v_add_f32 v%d, v4, v%d" % (r, r))
            k("v_and_b32 v4, 0xffff0000, v%d" % b); k("v_add_f32 v%d, v4, v%d" % (r + 1, r + 1))
            k("v_lshlrev_b32 v4, 16, v%d" % (b + 1)); k("v_add_f32 v%d, v4, v%d" % (r + 2, r + 2))
            k("v_and_b32 v4, 0xffff0000, v%d" % (b + 1)); k("v_add_f32 v%d, v4, v%d" % (r + 3, r + 3))
            bf16r_pair(k, r, r + 1, 4)
            bf16r_pair(k, r + 2, r + 3, 4)
            for i in range(4):
                k("v_mul_f32 v%d, v%d, v%d" % (U + i, r + i, r + i))
            for i in range(4):
                k("v_fma_f32 v%d, v%d, s62, 1.0" % (U + i, U + i))
            for i in range(4):
                k("v_mul_f32 v%d, v%d, v%d" % (U + i, U + i, r + i))
            for i in range(4):
                k("v_mul_f32 v%d, s63, v%d" % (U + i, U + i))
            for i in range(4):
                k("v_exp_f32 v%d, v%d" % (U + i, U + i))
            k("s_nop 0")
            for i in range(4):
                k("v_add_f32 v%d, 1.0, v%d" % (U + i, U + i))
            for i in range(4):
                k("v_rcp_f32 v%d, v%d" % (U + i, U + i))
            k("s_nop 0")
            for i in range(4):
                k("v_mul_f32 v%d, v%d, v%d" % (r + i, r + i, U + i))
            k("v_cvt_pk_bf16_f32 v4, v%d, v%d" % (r, r + 1))
            k("v_cvt_pk_bf16_f32 v5, v%d, v%d" % (r + 2, r + 3))
            k("s_mov_b32 s39, %d" % (fl * 16 * ldc * 2))
            k("buffer_store_dwordx2 v[4:5], v2, s[12:15], s39 offen offset:%d" % (p * 128 + e * 32))
    k("s_waitcnt vmcnt(0)")

import struct
def f32bits(x): return struct.unpack("<I", struct.pack("<f", x))[0]

STAMPS = False
def build():
    ks = []; ls = []
    slot = [0]
    def add(k, grid, blk, lds=0):
        ks.append(k); ls.append((k.name, grid, blk, lds))
    for layer in range(2):
        xin = (0, 0) if layer == 0 else (WS_ARG, WS_X2)
        kvoff = WS_KV + layer * KV_SET
        add(ln_kernel("ln1_%d_kernel" % layer, xin[0], xin[1], WS_XN, False, layer == 0), 512, 256)
        c = GemmCfg(a_arg=WS_ARG, a_off=WS_XN, lda=1024, a_bytes=XB, b_arg=8, b_off=0, ldb=3072, b_bytes=1024*3072*2,
                    K=1024, NP=3, S=3, tiles_n=16, tn_stride=128, p_stride=2048,
                    swap=[True, True, False, False, False, False], extra_ptrs=[(WS_ARG, 50)], epilogue=epi_qkv)
        c.kv_off = kvoff
        c.stamps = STAMPS; c.stamp_slot = slot[0]; slot[0] += 1
        k = gemm_kernel("qkv_%d_kernel" % layer, c); add(k, 256, 512, k.lds)
        add(o_kernel("o_%d_kernel" % layer, kvoff), 256, 256)
        c = GemmCfg(a_arg=WS_ARG, a_off=WS_O, lda=1024, a_bytes=XB, b_arg=16, b_off=0, ldb=1024, b_bytes=1024*1024*2,
                    K=1024, NP=1, S=6, tiles_n=16, tn_stride=128, p_stride=0, swap=[True]*2,
                    extra_ptrs=[(WS_ARG, 50)] + ([(0, 54)] if layer == 0 else []), epilogue=epi_resid)
        c.out_is_dout = False; c.out_off = WS_X1 if layer == 0 else WS_X3
        c.res_is_input = (layer == 0); c.res_off = WS_X2; c.bias_arg = None
        c.stamps = STAMPS; c.stamp_slot = slot[0]; slot[0] += 1
        k = gemm_kernel("proj_%d_kernel" % layer, c); add(k, 256, 512, k.lds)
        xm = WS_X1 if layer == 0 else WS_X3
        add(ln_kernel("ln2_%d_kernel" % layer, WS_ARG, xm, WS_XN, True, False), 512, 256)
        c = GemmCfg(a_arg=WS_ARG, a_off=WS_XN, lda=1024, a_bytes=XB, b_arg=32, b_off=0, ldb=3584, b_bytes=1024*3584*2,
                    K=1024, NP=4, S=3, tiles_n=14, tn_stride=512, p_stride=128, swap=[True]*8,
                    extra_ptrs=[(WS_ARG, 50), (40, 56)], epilogue=epi_gelu)
        c.stamps = STAMPS; c.stamp_slot = slot[0]; slot[0] += 1
        k = gemm_kernel("mlp1_%d_kernel" % layer, c)
        add(k, 224, 512, k.lds)
        c = GemmCfg(a_arg=WS_ARG, a_off=WS_H, lda=3584, a_bytes=2048*3584*2, b_arg=48, b_off=0, ldb=1024, b_bytes=3584*1024*2,
                    K=3584, NP=1, S=6, tiles_n=16, tn_stride=128, p_stride=0, swap=[True]*2,
                    extra_ptrs=[(WS_ARG, 50), (64, 52), (56, 56)], epilogue=epi_resid)
        c.out_is_dout = (layer == 1); c.out_off = WS_X2
        c.res_is_input = False; c.res_off = xm; c.bias_arg = 56
        c.stamps = STAMPS; c.stamp_slot = slot[0]; slot[0] += 1
        k = gemm_kernel("mlp2_%d_kernel" % layer, c); add(k, 256, 512, k.lds)
    return build_file(ks, ls)

if __name__ == "__main__":
    if len(sys.argv) > 2: STAMPS = True
    s = build()
    open(sys.argv[1] if len(sys.argv) > 1 else "full.s", "w").write(s)
```
